```python
import torch

def _softmax(x, axis=-1):
    return torch.softmax(x, dim=axis)
def _gelu(x):
    return torch.nn.functional.gelu(x, approximate="tanh")
def _silu(x):
    return torch.nn.functional.silu(x)
def _sigmoid(x):
    return torch.sigmoid(x)
def _layernorm(x, axis=-1, eps=1e-5):
    m = x.mean(dim=axis, keepdim=True)
    v = x.var(dim=axis, keepdim=True, unbiased=False)
    return (x - m) / torch.sqrt(v + eps)
def _scatter_add(tgt, idx, src, axis=0):
    return tgt.clone().index_add_(axis, idx, src)
def _segment_sum(src, seg, n):
    out = torch.zeros((n,) + src.shape[1:], dtype=src.dtype)
    return out.index_add_(0, seg, src)
def _pad(x, pw):
    flat = tuple(v for pair in reversed(pw) for v in pair)
    return torch.nn.functional.pad(x, flat)

kernel_name = 'sequential_preLN__sliding_local_dilated__dense_activation_gelu__prompt'

def setup_inputs():

    _w = (lambda a: (lambda t: t.to(torch.bfloat16) if t.is_floating_point() else t)(torch.as_tensor(a)))
    def _A_setup():
        B, S, D = 1, 2048, 512
        return {
            "x": _w((lambda *s: torch.randn(*s, dtype=torch.bfloat16) * 0.05)(B, S, D)),
            "wqkv": _w((lambda *s: torch.randn(*s, dtype=torch.bfloat16) * 0.05)(D, 3 * D)),
            "wo": _w((lambda *s: torch.randn(*s, dtype=torch.bfloat16) * 0.05)(D, D)),
        }
    _A_in = _A_setup()

    def _B_setup():
        B, S, D, F = 1, 2048, 512, 1792
        return {
            "x": _w((lambda *s: torch.randn(*s, dtype=torch.bfloat16) * 0.05)(B, S, D)),
            "w1": _w((lambda *s: torch.randn(*s, dtype=torch.bfloat16) * 0.8)(D, F) * (D ** -0.5)),
            "b1": _w((lambda *s: torch.randn(*s, dtype=torch.bfloat16) * 0.8)(F) * 0.01),
            "w2": _w((lambda *s: torch.randn(*s, dtype=torch.bfloat16) * 0.8)(F, D) * (F ** -0.5)),
            "b2": _w((lambda *s: torch.randn(*s, dtype=torch.bfloat16) * 0.8)(D) * 0.01),
        }
    _B_in = _B_setup()

    return {
        "A_x": _A_in["x"],
        "A_wqkv": _A_in["wqkv"],
        "A_wo": _A_in["wo"],
        "B_x": _B_in["x"],
        "B_w1": _B_in["w1"],
        "B_b1": _B_in["b1"],
        "B_w2": _B_in["w2"],
        "B_b2": _B_in["b2"],
    }

def reference(A_x, A_wqkv, A_wo, B_x, B_w1, B_b1, B_w2, B_b2):
    def _A_ref(x, wqkv, wo):
        B, S, D = x.shape
        H = 32; Dh = D // H
        W, dil = 8, 2
        qkv = (lambda x, *d: x.permute(*d))((x @ wqkv).reshape(B, S, 3, H, Dh), 2, 0, 3, 1, 4)
        q, k, v = qkv[0], qkv[1], qkv[2]
        scale = Dh ** -0.5
        pos = torch.arange(S)
        off = torch.arange(W) * dil
        idx = pos[:, None] - off[None, :]
        mask = idx >= 0
        idx_c = torch.where(mask, idx, 0).reshape(-1)
        kg = k[:, :, idx_c, :].reshape(B, H, S, W, Dh)
        vg = v[:, :, idx_c, :].reshape(B, H, S, W, Dh)
        logits = torch.einsum("bhsd,bhswd->bhsw", q, kg) * scale
        logits = torch.where(mask[None, None, :, :], logits, -1e9)
        attn = _softmax(logits, axis=-1)
        o = torch.einsum("bhsw,bhswd->bhsd", attn, vg)
        return (lambda x, *d: x.permute(*d))(o, 0, 2, 1, 3).reshape(B, S, D) @ wo

    def _B_ref(x, w1, b1, w2, b2):
        h = torch.einsum("bsd,df->bsf", x, w1) + b1
        h = _gelu(h)
        return torch.einsum("bsf,fd->bsd", h, w2) + b2

    x = A_x
    h = x + _A_ref(_layernorm(x, axis=-1), A_wqkv, A_wo)
    h2 = h + _B_ref(_layernorm(h, axis=-1), B_w1, B_b1, B_w2, B_b2)
    return h2
```

```python
import re

TRANS = ("v_exp_f32", "v_log_f32", "v_rcp_f32", "v_rsq_f32", "v_sqrt_f32", "v_sin_f32", "v_cos_f32", "v_rcp_iflag_f32")
NO_DST_S = ("s_cmp", "s_waitcnt", "s_barrier", "s_branch", "s_cbranch", "s_nop", "s_sleep", "s_setprio", "s_endpgm", "s_bitcmp", "s_setreg", "s_sethalt")

def split_ops(s):
    out = []; depth = 0; cur = ""
    for ch in s:
        if ch in "[(": depth += 1
        if ch in "])": depth -= 1
        if ch == "," and depth == 0:
            out.append(cur.strip()); cur = ""
        else: cur += ch
    if cur.strip(): out.append(cur.strip())
    return out

_reg = re.compile(r"^-?\|?(?:abs\()?([vsa])(\d+)\)?\|?$")
_rng = re.compile(r"^-?([vsa])\[(\d+):(\d+)\]$")
def regs(tok):
    tok = tok.strip()
    m = _reg.match(tok)
    if m: return {(m.group(1), int(m.group(2)))}
    m = _rng.match(tok)
    if m: return {(m.group(1), i) for i in range(int(m.group(2)), int(m.group(3)) + 1)}
    if tok == "vcc": return {("s", "vcc_lo"), ("s", "vcc_hi")}
    if tok in ("vcc_lo", "vcc_hi"): return {("s", tok)}
    if tok == "exec": return {("s", "exec_lo"), ("s", "exec_hi")}
    if tok in ("exec_lo", "exec_hi"): return {("s", tok)}
    if tok == "m0": return {("s", "m0")}
    return set()

class I:
    __slots__ = ("text", "op", "ops", "mods", "defs", "uses", "kind", "passes", "A", "B", "C", "tag", "pos", "comment", "dpp", "wide_store_data", "sgpr_vmem")
    def __init__(self, text, tag=None):
        self.text = text.strip(); self.tag = tag
        t = self.text.split(";")[0].strip()
        parts = t.split(None, 1)
        self.op = parts[0]
        rest = parts[1] if len(parts) > 1 else ""
        toks = split_ops(rest)
        self.mods = []
        if toks:
            last = toks[-1].split()
            toks[-1] = last[0]
            self.mods = last[1:]
        self.ops = toks
        self.defs = set(); self.uses = set(); self.kind = None; self.passes = 0
        self.A = self.B = self.C = set(); self.dpp = False; self.wide_store_data = set(); self.sgpr_vmem = set()
        self.classify()
    def classify(self):
        op, o = self.op, self.ops
        R = lambda i: regs(o[i]) if i < len(o) else set()
        allsrc = lambda st: set().union(*[regs(x) for x in o[st:]]) if len(o) > st else set()
        if op.startswith("v_mfma"):
            self.kind = "mfma"
            self.passes = 8 if "32x32" in op else 4
            self.defs = R(0); self.A = R(1); self.B = R(2); self.C = R(3)
            self.uses = self.A | self.B | self.C
        elif op.startswith("v_"):
            self.kind = "valu"
            self.dpp = any(m.startswith(("row_", "quad_perm", "wave_")) for m in self.mods) or op.endswith("_dpp")
            if op.startswith("v_cmp"):
                self.defs = R(0); self.uses = allsrc(1)
            elif op.startswith(("v_add_co", "v_sub_co", "v_subrev_co")):
                self.defs = R(0) | R(1); self.uses = allsrc(2)
            elif op.startswith(("v_addc_co", "v_subb_co")):
                self.defs = R(0) | R(1); self.uses = allsrc(2)
            elif op.startswith("v_permlane") and "swap" in op:
                self.defs = R(0) | R(1); self.uses = R(0) | R(1)
            elif op.startswith(("v_fmac", "v_dot2c", "v_pk_fmac", "v_writelane")):
                self.defs = R(0); self.uses = allsrc(0)
            else:
                self.defs = R(0); self.uses = allsrc(1)
                if self.dpp: self.uses |= R(0)
            if op in TRANS: self.kind = "trans"
        elif op.startswith("ds_"):
            self.kind = "ds"
            if op.startswith(("ds_read", "ds_bpermute", "ds_permute", "ds_swizzle")) or "_rtn" in op:
                self.defs = R(0); self.uses = allsrc(1)
            else:
                self.uses = allsrc(0)
        elif op.startswith("buffer_"):
            self.kind = "vmem"
            if op.startswith(("buffer_wbl2", "buffer_inv")):
                pass
            elif op.startswith("buffer_load"):
                if "lds" in self.mods:
                    self.uses = allsrc(0) | {("s", "m0")}; self.sgpr_vmem = {r for r in self.uses if r[0] == "s"}
                    self.kind = "dma"
                else:
                    self.defs = R(0); self.uses = allsrc(1)
            elif op.startswith("buffer_store"):
                self.uses = allsrc(0)
                if "x4" in op or "x3" in op: self.wide_store_data = R(0)
            elif op.startswith("buffer_atomic"):
                self.uses = allsrc(0)
                if "sc0" in self.mods: self.defs = R(0)
            self.sgpr_vmem = {r for r in self.uses if r[0] == "s"}
        elif op.startswith("global_"):
            self.kind = "vmem"
            if op.startswith("global_load_lds"):
                self.kind = "dma"; self.uses = allsrc(0) | {("s", "m0")}
            elif op.startswith("global_load"):
                self.defs = R(0); self.uses = allsrc(1)
            elif op.startswith("global_store"):
                self.uses = allsrc(0)
                if "x4" in op or "x3" in op: self.wide_store_data = R(1)
            elif op.startswith("global_atomic"):
                if "sc0" in self.mods:
                    self.defs = R(0); self.uses = allsrc(1)
                else:
                    self.uses = allsrc(0)
            self.sgpr_vmem = {r for r in self.uses if r[0] == "s"}
        elif op.startswith(("s_load", "s_memtime", "s_memrealtime", "s_buffer_load")):
            self.kind = "smem"
            self.defs = R(0); self.uses = allsrc(1)
        elif op.startswith("s_"):
            self.kind = "salu"
            if op.startswith(NO_DST_S):
                self.uses = allsrc(0)
            elif op.startswith(("s_addk", "s_mulk")):
                self.defs = R(0); self.uses = R(0)
            elif "saveexec" in op:
                self.defs = R(0) | regs("exec"); self.uses = allsrc(1) | regs("exec")
            else:
                self.defs = R(0); self.uses = allsrc(1)
        else:
            raise ValueError("unknown instruction: " + self.text)

class Label:
    def __init__(self, name): self.name = name
class Raw:
    def __init__(self, text): self.text = text
class WaitTag:
    def __init__(self, cls, tag): self.cls = cls; self.tag = tag

class KB:
    def __init__(self):
        self.items = []
        self.uid = 0
        self.tag = None
    def __call__(self, text, tag=None):
        for l in text.strip("\n").split("\n"):
            l = l.strip()
            if not l or l.startswith(";"): continue
            if l.endswith(":") and " " not in l:
                self.items.append(Label(l[:-1])); continue
            self.items.append(I(l, tag if tag is not None else self.tag))
    def add(self, items):
        self.items.extend(items)
    def label(self, name): self.items.append(Label(name))
    def newlabel(self, base="L"):
        self.uid += 1; return f"{base}_{self.uid}_{id(self) & 0xffff:x}"
    def raw(self, text): self.items.append(Raw(text))
    def wait_vm(self, tag): self.items.append(WaitTag("vm", tag))
    def wait_lgkm(self, tag): self.items.append(WaitTag("lgkm", tag))
    def take(self):
        it = self.items; self.items = []; return it

def mk(text, tag=None):
    k = KB(); k(text, tag); return k.items

def interleave(primary, filler, ratio=None, start=0):
    out = []; n = len(primary); j = 0
    for i, g in enumerate(primary):
        out.extend(g)
        if i < start: continue
        tgt = len(filler) * (i + 1 - start) // max(n - start, 1)
        while j < tgt:
            out.append(filler[j]); j += 1
    out.extend(filler[j:])
    return out

VM_MAX, LGKM_MAX = 63, 15

def finalize(items, check_empty_at_labels=True, stats=None):
    out = []
    pos = 0
    hist = []
    vmq = []
    lgq = []
    snaps = {}
    nnops = 0; nwaits = 0
    def emit(text):
        out.append("  " + text)
    def emit_nop(n):
        nonlocal pos, nnops
        while n > 0:
            m = min(n, 16)
            emit(f"s_nop {m-1}"); pos += m; n -= m; nnops += 1
    def emit_wait(vm=None, lg=None):
        nonlocal pos, nwaits
        parts = []
        if vm is not None:
            vm = min(vm, VM_MAX); parts.append(f"vmcnt({vm})")
            del vmq[:max(0, len(vmq) - vm)]
        if lg is not None:
            if any(e["smem"] for e in lgq): lg = 0
            lg = min(lg, LGKM_MAX); parts.append(f"lgkmcnt({lg})")
            del lgq[:max(0, len(lgq) - lg)]
        if parts:
            emit("s_waitcnt " + " ".join(parts)); pos += 1; nwaits += 1
    def need(q, touched):
        idx = -1
        for i, e in enumerate(q):
            if e["defs"] & touched or e.get("poison") and e["defs"] & touched: idx = i
        if idx < 0: return None
        if q[idx].get("poison"): return 0
        return len(q) - 1 - idx
    for it in items:
        if isinstance(it, Raw):
            out.append(it.text); continue
        if isinstance(it, Label):
            for (h, v, l, p) in snaps.pop(it.name, []):
                for (ins, age) in h:
                    c = I(ins.text); c.pos = pos - age
                    hist.append(c)
                have = {id(e) for e in vmq}
                for e in v:
                    e["poison"] = True
                    if id(e) not in have: vmq.insert(0, e)
                have = {id(e) for e in lgq}
                for e in l:
                    e["poison"] = True
                    if id(e) not in have: lgq.insert(0, e)
            hist.sort(key=lambda x: x.pos)
            out.append(it.name + ":"); continue
        if isinstance(it, WaitTag):
            q = vmq if it.cls == "vm" else lgq
            idx = max([i for i, e in enumerate(q) if e["tag"] == it.tag], default=-1)
            if idx >= 0:
                n = 0 if any(e.get("poison") for e in q[:idx+1]) else len(q) - 1 - idx
                if it.cls == "vm": emit_wait(vm=n)
                else: emit_wait(lg=n)
            continue
        ins = it
        if ins.op == "s_waitcnt":
            m = re.search(r"vmcnt\((\d+)\)", ins.text); n = re.search(r"lgkmcnt\((\d+)\)", ins.text)
            if m: del vmq[:max(0, len(vmq) - int(m.group(1)))]
            if n:
                k = int(n.group(1))
                if k == 0 or not any(e["smem"] for e in lgq): del lgq[:max(0, len(lgq) - k)]
            emit(ins.text); pos += 1; continue
        touched = ins.uses | ins.defs
        nv = need(vmq, touched); nl = need(lgq, touched)
        if nv is not None or nl is not None: emit_wait(nv, nl)
        if ins.kind in ("vmem", "dma") and len(vmq) >= VM_MAX: emit_wait(vm=VM_MAX - 1)
        if ins.kind == "ds" and len(lgq) >= LGKM_MAX: emit_wait(lg=LGKM_MAX - 1)
        req = pos
        vdefs = {r for r in ins.defs if r[0] in "va"}
        for p in reversed(hist):
            d = pos - p.pos - 1
            if d > 20: break
            n = 0
            pv = p.kind in ("valu", "trans")
            if pv:
                pw = p.defs
                if ins.kind == "mfma" and (pw & ins.uses): n = max(n, 2)
                if ins.kind in ("valu", "trans"):
                    if p.kind == "trans" and (pw & ins.uses): n = max(n, 1)
                    if (ins.op.startswith("v_permlane") or ins.dpp) and (pw & ins.uses): n = max(n, 2)
                    if ins.op.startswith(("v_readlane", "v_readfirstlane")) and (pw & ins.uses): n = max(n, 1)
                    sw = {r for r in pw if r[0] == "s"}
                    if sw & ins.uses: n = max(n, 4 if ins.op.startswith(("v_readlane", "v_writelane")) else 2)
                sw = {r for r in pw if r[0] == "s"}
                if ins.kind in ("vmem", "dma") and (sw & ins.uses): n = max(n, 5)
                if ins.kind == "mfma" and (sw & regs("exec")): n = max(n, 4)
            if p.kind == "mfma":
                big = 12 if p.passes == 8 else 8
                if ins.kind == "mfma":
                    if p.defs & (ins.A | ins.B): n = max(n, big)
                    if p.defs & ins.C and not (p.defs == ins.C and p.passes == ins.passes): n = max(n, 10 if p.passes == 8 else 6)
                    if p.defs & ins.defs and not (p.defs == ins.defs and p.passes == ins.passes): n = max(n, big)
                    if p.defs == ins.defs and not (ins.C == ins.defs) : n = max(n, big)
                elif p.defs & (ins.uses | ins.defs): n = max(n, big)
                if ins.kind in ("valu", "trans") and (p.C & ins.defs): n = max(n, 7 if p.passes == 8 else 3)
            if p.kind == "salu" and ("s", "m0") in p.defs and ins.kind == "dma": n = max(n, 1)
            if p.wide_store_data and (p.wide_store_data & ins.defs): n = max(n, 2)
            if n > d: req = max(req, pos + (n - d))
        if req > pos: emit_nop(req - pos)
        ins.pos = pos
        emit(ins.text); pos += 1
        if ins.op == "s_nop":
            pos += int(ins.ops[0], 0)
        hist.append(ins)
        if len(hist) > 64: del hist[:32]
        if ins.kind in ("vmem", "dma"):
            vmq.append(dict(defs={r for r in ins.defs}, tag=ins.tag, smem=False))
        elif ins.kind == "ds":
            lgq.append(dict(defs=set(ins.defs), tag=ins.tag, smem=False))
            if len(lgq) > LGKM_MAX + 0:
                pass
        elif ins.kind == "smem":
            lgq.append(dict(defs=set(ins.defs), tag=ins.tag, smem=True))
        if ins.op.startswith(("s_cbranch", "s_branch")):
            tgt = ins.ops[0]
            snaps.setdefault(tgt, []).append(([(h, pos - h.pos) for h in hist if pos - h.pos <= 21], list(vmq), list(lgq), pos))
            if ins.op == "s_branch":
                hist = []; vmq = []; lgq = []
        if ins.op == "s_endpgm":
            hist = []; vmq = []; lgq = []
    if stats is not None:
        stats["nops"] = nnops; stats["waits"] = nwaits
    return "\n".join(out) + "\n"
```

```python
import sys, os
sys.path.insert(0, os.path.dirname(os.path.abspath(__file__)))
from kb import *

NAME = "sequential_preLN__sliding_local_dilated__dense_activation_gelu__prompt_kernel"

O_OFF   = 0
H_OFF   = 0x200000
H1_OFF  = 0x400000
ST_OFF  = 0xB00000
CNT_OFF = 0xB80000
STAMP_OFF = 0xC00000
WS_SIZE = 0x1000000
SLOT    = 34816
XBYTES  = 10240
R0, R1, R2 = 0, 65536, 131072
EX      = 131072
XR      = 147456
TAB     = 159744
T_STAT, T_CS, T_B1, T_CNT = TAB, TAB + 1024, TAB + 1536, TAB + 2048
UNIT    = 28672
UBASE   = [R2, R1, R1 + UNIT, R0, R0 + UNIT, R2, R1, R1 + UNIT]
EX4     = 0
LDS_BYTES = 163840
sX, sWQ, sWO, sW1, sW2, sWS, sOUT = 28, 32, 36, 40, 44, 48, 52
sW, sSG, sMEM, sRB, sCG = 56, 57, 58, 59, 60
sLW = 61
sT0, sT1, sT2, sT3 = 62, 63, 64, 65
sSPIN = 66
LOG2E = 1.4426950408889634

def srd(k, d, base, nbytes):
    k(f"""
    s_mov_b32 s{d}, s{base}
    s_mov_b32 s{d+1}, s{base+1}
    s_mov_b32 s{d+2}, {nbytes}
    s_mov_b32 s{d+3}, 0x20000
    """)
def S(d): return f"s[{d}:{d+3}]"
def V(a, n): return f"v[{a}:{a+n-1}]"
def fbits(x):
    import struct
    return "0x%08x" % struct.unpack("<I", struct.pack("<f", x))[0]

class Gen:
    def __init__(self, stop=4, stamps=False, spin=1 << 18):
        self.stop = stop; self.stamps = stamps; self.spin = spin
        self.nstamp = 0
        self.bar_c = []; self.bar_l = []

    def barrier(self, k, name, who):
        (self.bar_c if who == "c" else self.bar_l).append(name)
        k("s_barrier")
    def stamp(self, k, idx):
        if not self.stamps: return
        k(f"s_memtime s[{68+2*idx}:{69+2*idx}]")
        k("s_waitcnt lgkmcnt(0)")
    def spin_poll(self, k, vaddr, vtmp, base, target, sc="sc1"):
        loop = k.newlabel("poll"); done = k.newlabel("pdone")
        k(f"s_mov_b32 s{sSPIN}, {self.spin}")
        k.label(loop)
        k(f"""
        global_load_dword v{vtmp}, v{vaddr}, {base} {sc}
        s_sub_u32 s{sSPIN}, s{sSPIN}, 1
        s_waitcnt vmcnt(0)
        v_readfirstlane_b32 s{sT0}, v{vtmp}
        s_cmp_eq_u32 s{sSPIN}, 0
        s_cbranch_scc1 {done}
        s_cmp_lt_u32 s{sT0}, {target}
        s_cbranch_scc1 {loop}
        """)
        k.label(done)
    def signal(self, k, cnt_idx_sreg, lds_cnt, va, vb):
        skip = k.newlabel("sig")
        k(f"""
        s_waitcnt vmcnt(0)
        s_mov_b64 s[{sT2}:{sT3}], exec
        s_mov_b64 exec, 1
        v_mov_b32 v{va}, {lds_cnt}
        v_mov_b32 v{vb}, 1
        ds_add_rtn_u32 v{va}, v{va}, v{vb}
        s_waitcnt lgkmcnt(0)
        v_readfirstlane_b32 s{sT0}, v{va}
        s_cmp_lg_u32 s{sT0}, 3
        s_cbranch_scc1 {skip}
        s_lshl_b32 s{sT0}, s{cnt_idx_sreg}, 8
        s_add_u32 s{sT0}, s{sT0}, {CNT_OFF}
        v_mov_b32 v{va}, s{sT0}
        global_atomic_add v{va}, v{vb}, s[24:25]
        """)
        k.label(skip)
        k(f"s_mov_b64 exec, s[{sT2}:{sT3}]")

    def prologue(self, k):
        k(f"""
        s_cmp_ge_u32 s2, 256
        s_cbranch_scc1 L_END
        s_load_dwordx16 s[4:19], s[0:1], 0
        s_load_dwordx4 s[20:23], s[0:1], 64
        s_load_dwordx2 s[24:25], s[0:1], 80
        v_lshrrev_b32 v1, 6, v0
        v_and_b32 v0, 63, v0
        v_readfirstlane_b32 s{sW}, v1
        s_and_b32 s{sT0}, s2, 7
        s_lshr_b32 s{sT1}, s2, 3
        s_and_b32 s{sMEM}, s{sT1}, 15
        s_lshr_b32 s{sT1}, s{sT1}, 4
        s_lshl_b32 s{sSG}, s{sT0}, 1
        s_add_u32 s{sSG}, s{sSG}, s{sT1}
        s_lshr_b32 s{sT1}, s{sMEM}, 3
        s_lshl_b32 s{sRB}, s{sSG}, 1
        s_add_u32 s{sRB}, s{sRB}, s{sT1}
        s_and_b32 s{sCG}, s{sMEM}, 7
        v_lshlrev_b32 v1, 4, v0
        s_cmp_ge_u32 s{sW}, 4
        s_cbranch_scc1 L_LOADER
        """)

    def loader(self, k):
        B = lambda n: self.barrier(k, n, "l")
        vX0, vX1, vXh, vW, vWo, vW1 = 4, 5, 6, 8, 14, 15
        sXb, sS0, sChX, sChW, sMX, sMH, sMW = 67, 90, 91, 92, 93, 94, 95
        k.label("L_LOADER")
        k(f"""
        s_sub_u32 s{sLW}, s{sW}, 4
        v_lshrrev_b32 v2, 3, v0
        v_and_b32 v3, 7, v0
        s_lshr_b32 s{sT0}, s{sLW}, 1
        s_lshl_b32 s{sT0}, s{sT0}, 5
        s_and_b32 s{sT1}, s{sLW}, 1
        s_add_u32 s{sT0}, s{sT0}, s{sT1}
        s_lshl_b32 s{sT1}, s{sRB}, 6
        s_add_u32 s{sT0}, s{sT0}, s{sT1}
        s_lshl_b32 s{sXb}, s{sT0}, 10
        v_lshrrev_b32 v16, 1, v2
        v_xor_b32 v16, v16, v3
        v_lshlrev_b32 v16, 4, v16
        v_lshl_add_u32 v{vX0}, v2, 11, v16
        v_add_u32 v{vX0}, s{sXb}, v{vX0}
        v_xor_b32 v{vX1}, 64, v{vX0}
        v_add_u32 v{vX1}, 16384, v{vX1}
        s_lshl_b32 s{sT0}, s{sLW}, 2
        v_add_u32 v16, s{sT0}, v2
        v_lshrrev_b32 v17, 1, v16
        v_and_b32 v17, 7, v17
        v_xor_b32 v17, v17, v3
        v_lshlrev_b32 v17, 4, v17
        v_lshlrev_b32 v18, 1, v16
        v_subrev_u32 v19, 15, v18
        v_subrev_u32 v18, 32, v18
        v_cmp_gt_u32 vcc, 8, v16
        v_cndmask_b32 v18, v18, v19, vcc
        s_lshl_b32 s{sT1}, s{sRB}, 6
        v_add_u32 v18, s{sT1}, v18
        v_lshlrev_b32 v18, 10, v18
        v_add_u32 v{vXh}, v18, v17
        v_and_b32 v16, 7, v16
        v_cmp_eq_u32 vcc, 0, v16
        v_mov_b32 v17, 0x80000000
        v_cndmask_b32 v{vXh}, v{vXh}, v17, vcc
        """)
        for e in range(2):
            for i in range(3):
                r = vW + 3*e + i
                k(f"""
                v_add_u32 v16, {64*i}, v0
                v_mul_u32_u24 v17, 2731, v16
                v_lshrrev_b32 v17, 16, v17
                v_mul_u32_u24 v18, 24, v17
                v_sub_u32 v18, v16, v18
                v_lshrrev_b32 v19, 3, v18
                v_and_b32 v18, 7, v18
                v_lshrrev_b32 v20, 1, v17
                v_and_b32 v20, 1, v20
                v_or_b32 v20, {2*e}, v20
                v_lshlrev_b32 v20, 1, v20
                v_xor_b32 v18, v18, v20
                v_lshlrev_b32 v18, 4, v18
                v_lshl_add_u32 v18, v19, 10, v18
                v_mul_u32_u24 v17, 3072, v17
                v_add_u32 v{r}, v17, v18
                """)
        k(f"""
        s_lshl_b32 s{sT0}, s{sLW}, 4
        s_mul_i32 s{sT0}, s{sT0}, 3072
        s_lshl_b32 s{sT1}, s{sCG}, 7
        s_add_u32 s{sT0}, s{sT0}, s{sT1}
        """)
        for e in range(2):
            for i in range(3):
                r = vW + 3*e + i
                k(f"v_add_u32 v{r}, s{sT0}, v{r}")
            if e == 0: k(f"s_add_u32 s{sT0}, s{sT0}, {8*3072}")
        k(f"""
        s_add_u32 s{sS0}, s{sRB}, s{sCG}
        s_add_u32 s{sMX}, s{sLW}, 1
        s_lshl_b32 s{sMX}, s{sMX}, 11
        s_lshl_b32 s{sMH}, s{sLW}, 9
        s_mul_i32 s{sMW}, s{sLW}, 6144
        s_add_u32 s{sMW}, s{sMW}, {XBYTES}
        s_waitcnt lgkmcnt(0)
        """)
        srd(k, sX, 4, 2048*1024); srd(k, sWQ, 6, 512*3072)
        def stage(i):
            slot = (i % 4) * SLOT
            k.tag = f"st{i}"
            k(f"""
            s_add_u32 s{sT0}, s{sS0}, {i}
            s_and_b32 s{sT0}, s{sT0}, 7
            s_lshl_b32 s{sChX}, s{sT0}, 7
            s_mul_i32 s{sChW}, s{sT0}, {64*3072}
            s_add_u32 m0, s{sMX}, {slot}
            buffer_load_dwordx4 v{vX0}, {S(sX)}, s{sChX} offen lds
            s_add_u32 m0, m0, 1024
            buffer_load_dwordx4 v{vX1}, {S(sX)}, s{sChX} offen lds
            s_add_u32 m0, s{sMH}, {slot}
            s_mov_b32 exec_hi, 0
            buffer_load_dwordx4 v{vXh}, {S(sX)}, s{sChX} offen lds
            s_mov_b32 exec_hi, -1
            s_add_u32 m0, s{sMW}, {slot}
            """)
            for q in range(6):
                k(f"buffer_load_dwordx4 v{vW+q}, {S(sWQ)}, s{sChW} offen lds")
                if q < 5: k("s_add_u32 m0, m0, 1024")
            k.tag = None
        for i in range(4): stage(i)
        srd(k, sWO, 8, 512*1024); srd(k, sW1, 12, 512*3584); srd(k, sW2, 16, 1792*1024)
        k(f"""
        v_lshrrev_b32 v16, 1, v2
        v_and_b32 v16, 1, v16
        v_lshlrev_b32 v16, 2, v16
        v_xor_b32 v16, v16, v3
        v_lshlrev_b32 v16, 4, v16
        v_lshl_add_u32 v{vWo}, v2, 10, v16
        s_lshl_b32 s{sT0}, s{sCG}, 7
        v_add_u32 v{vWo}, s{sT0}, v{vWo}
        v_mul_u32_u24 v{vW1}, 3584, v2
        v_add_u32 v{vW1}, v{vW1}, v16
        s_min_u32 s{sT0}, s{sMEM}, 13
        s_lshl_b32 s{sT0}, s{sT0}, 8
        v_add_u32 v{vW1}, s{sT0}, v{vW1}
        """)
        def rows128(tag, vaddr, srd_, n, lds_base, lds_wave, g_wave_rows, row_bytes, extra_s=0, extra_reg=None):
            k.tag = tag
            k(f"s_mul_i32 s{sT1}, s{sLW}, {lds_wave}\ns_add_u32 m0, s{sT1}, {lds_base}")
            k(f"s_mov_b32 s{sT0}, s{g_wave_rows}" if isinstance(g_wave_rows, int) else g_wave_rows)
            if extra_s: k(f"s_add_u32 s{sT0}, s{sT0}, {extra_s}")
            for i in range(n):
                k(f"buffer_load_dwordx4 v{vaddr}, {S(srd_)}, s{sT0} offen lds")
                if i < n-1: k(f"s_add_u32 m0, m0, 1024\ns_add_u32 s{sT0}, s{sT0}, {8*row_bytes}")
            k.tag = None
        def load_xres():
            k.tag = "xr"
            k(f"""
            s_lshl_b32 s{sT0}, s{sCG}, 7
            s_lshl_b32 s{sT1}, s{sLW}, 11
            s_add_u32 m0, s{sT1}, {XR}
            buffer_load_dwordx4 v{vX0}, {S(sX)}, s{sT0} offen lds
            s_add_u32 m0, m0, 1024
            buffer_load_dwordx4 v{vX1}, {S(sX)}, s{sT0} offen lds
            """)
            k.tag = None
        def load_wo():
            rows128("wo", vWo, sWO, 16, R0, 16384, f"s_lshl_b32 s{sT0}, s{sLW}, 17", 1024)
        def load_w1(P):
            rows128(f"w1{P}", vW1, sW1, 16, R1 if P == 0 else R0, 16384, f"s_mul_i32 s{sT0}, s{sLW}, {128*3584}", 3584, extra_s=128*P)
        def load_u(u):
            g = f"s_lshr_b32 s{sT0}, s{sLW}, 1\ns_mul_i32 s{sT0}, s{sT0}, {896*1024}\ns_and_b32 s{sT2}, s{sLW}, 1\ns_mul_i32 s{sT2}, s{sT2}, {56*1024}\ns_add_u32 s{sT0}, s{sT0}, s{sT2}"
            rows128(f"u{u}", vWo, sW2, 7, UBASE[u], 56*128, g, 1024, extra_s=112*u*1024)
        for i in range(8):
            k.wait_vm(f"st{i}")
            B(f"A{i}")
            if 1 <= i <= 4: stage(i + 3)
            if i == 5: load_xres()
            if i == 6: load_wo()
        B("A8")
        if self.stop == 1:
            k("s_waitcnt vmcnt(0)\ns_branch L_END"); return
        load_w1(0)
        k.wait_vm("wo")
        B("B0")
        B("B1")
        load_w1(1)
        B("B2")
        if self.stop == 2:
            k("s_waitcnt vmcnt(0)\ns_branch L_END"); return
        k("s_waitcnt vmcnt(0)")
        B("C0")
        load_u(0)
        B("C1")
        B("C2")
        load_u(1); load_u(2)
        B("C3")
        if self.stop == 3:
            k("s_waitcnt vmcnt(0)\ns_branch L_END"); return
        load_u(3); load_u(4)
        k.wait_vm("u2")
        B("D0")
        for u in range(8):
            if u + 1 < 8: k.wait_vm(f"u{u+1}")
            B(f"D{u+1}")
            if u + 5 < 8: load_u(u + 5)
        k("s_branch L_END")

    def compute(self, k):
        self.p1(k)
        if self.stop == 1:
            self.finish(k); return
        self.p2(k)
        if self.stop == 2:
            self.finish(k); return
        self.p3(k)
        if self.stop == 3:
            self.finish(k); return
        self.p4(k)
        self.finish(k)

    def finish(self, k):
        if self.stamps:
            n = 10
            k(f"""
            s_waitcnt vmcnt(0) lgkmcnt(0)
            s_lshl_b32 s{sT0}, s2, 2
            s_add_u32 s{sT0}, s{sT0}, s{sW}
            s_lshl_b32 s{sT0}, s{sT0}, 6
            s_add_u32 s{sT0}, s{sT0}, {STAMP_OFF}
            v_mov_b32 v2, s{sT0}
            """)
            for i in range(n):
                k(f"v_mov_b32 v3, s{68+2*i}\nglobal_store_dword v2, v3, s[24:25] offset:{4*i}")
        k("s_branch L_END")

    def p1(self, k):
        B = lambda n: self.barrier(k, n, "c")
        vXc0, vXc1, vS0, vS1, vWc = 4, 5, 6, 7, 8
        ONES = 12
        XA, WA, XB, WB = 16, 40, 52, 76
        aQ, aK, aV, aCQ, aCK, aCV, aSS, aGS, aSH, aGH = 88, 104, 124, 144, 148, 152, 156, 160, 164, 168
        bCur, bPrev, bPrev0, bSpec, mC = 172, 176, 180, 184, 188
        vRdy = 190
        sM1, sM2, sM3, sDiag = 90, 92, 94, 96
        self.stamp(k, 0)
        k(f"""
        v_and_b32 v2, 15, v0
        v_lshrrev_b32 v3, 4, v0
        v_lshrrev_b32 v9, 1, v2
        v_and_b32 v9, 7, v9
        v_xor_b32 v9, v9, v3
        v_lshlrev_b32 v9, 4, v9
        v_lshl_add_u32 v{vXc0}, v2, 7, v9
        v_xor_b32 v{vXc1}, 64, v{vXc0}
        s_add_u32 s{sT0}, s{sW}, 1
        s_lshl_b32 s{sT0}, s{sT0}, 11
        v_add_u32 v{vS0}, s{sT0}, v{vXc0}
        v_add_u32 v{vS1}, s{sT0}, v{vXc1}
        v_lshrrev_b32 v9, 2, v2
        v_lshl_add_u32 v10, v3, 3, v9
        v_mul_u32_u24 v10, 384, v10
        v_lshrrev_b32 v9, 1, v9
        v_and_b32 v11, 1, v3
        v_lshl_or_b32 v9, v11, 1, v9
        v_xor_b32 v9, s{sW}, v9
        v_lshl_add_u32 v10, v9, 5, v10
        v_and_b32 v9, 3, v0
        v_lshl_add_u32 v10, v9, 3, v10
        v_add_u32 v{vWc}, {XBYTES}, v10
        v_mov_b32 v{ONES}, 0x3f803f80
        v_mov_b32 v{ONES+1}, 0x3f803f80
        v_mov_b32 v{ONES+2}, 0x3f803f80
        v_mov_b32 v{ONES+3}, 0x3f803f80
        """)
        l1 = k.newlabel("noinit"); l2 = k.newlabel("nolead")
        k(f"""
        s_cmp_lg_u32 s{sW}, 0
        s_cbranch_scc1 {l1}
        v_mov_b32 v9, {T_CNT}
        v_mov_b32 v16, 0
        v_mov_b32 v17, 0
        v_mov_b32 v18, 0
        v_mov_b32 v19, 0
        ds_write_b128 v9, v[16:19]
        s_waitcnt lgkmcnt(0)
        s_cmp_lg_u32 s{sMEM}, 0
        s_cbranch_scc1 {l2}
        s_lshl_b32 s{sT0}, s{sSG}, 1
        v_add_u32 v9, s{sT0}, v0
        s_add_u32 s{sT0}, s{sSG}, 32
        v_mov_b32 v10, s{sT0}
        v_cmp_eq_u32 vcc, 2, v0
        v_cndmask_b32 v9, v9, v10, vcc
        v_add_u32 v10, 16, v10
        v_cmp_eq_u32 vcc, 3, v0
        v_cndmask_b32 v9, v9, v10, vcc
        v_lshlrev_b32 v9, 8, v9
        v_add_u32 v9, {CNT_OFF}, v9
        s_waitcnt lgkmcnt(0)
        s_mov_b64 exec, 15
        global_store_dword v9, v16, s[24:25] sc1
        s_waitcnt vmcnt(0)
        s_mov_b64 exec, 1
        s_lshl_b32 s{sT0}, s{sSG}, 2
        v_mov_b32 v9, s{sT0}
        v_mov_b32 v10, 1
        global_store_dword v9, v10, s[22:23] sc1
        s_mov_b64 exec, -1
        """)
        k.label(l2); k.label(l1)
        NEG = fbits(-1e30)
        k(f"v_mov_b32 v9, {NEG}\nv_mov_b32 v10, 0\nv_lshlrev_b32 v11, 2, v3")
        k(f"s_cmp_eq_u32 s{sRB}, 0\ns_cselect_b64 s[{sT2}:{sT3}], -1, 0")
        for r in range(4):
            k(f"""
            v_add_u32 v16, {r}, v11
            v_sub_u32 v17, v2, v16
            v_cmp_gt_u32 vcc, 8, v17
            v_cndmask_b32 v{bCur+r}, v9, v10, vcc
            v_cndmask_b32 v{20+r}, 0, -1, vcc
            v_sub_u32 v17, v16, v2
            v_cmp_le_i32 vcc, 9, v17
            v_cndmask_b32 v{bPrev+r}, v9, v10, vcc
            v_cndmask_b32 v{bPrev0+r}, v{bPrev+r}, v9, s[{sT2}:{sT3}]
            v_cmp_le_i32 vcc, 1, v17
            v_cndmask_b32 v18, v9, v10, vcc
            v_cmp_gt_u32 vcc, 8, v16
            v_cndmask_b32 v18, v9, v18, vcc
            v_cndmask_b32 v{bSpec+r}, v18, v9, s[{sT2}:{sT3}]
            """)
        k(f"""
        v_and_b32 v20, 0xffff, v20
        v_and_b32 v21, 0xffff0000, v21
        v_or_b32 v{mC}, v20, v21
        v_and_b32 v22, 0xffff, v22
        v_and_b32 v23, 0xffff0000, v23
        v_or_b32 v{mC+1}, v22, v23
        v_and_b32 v9, 3, v2
        v_cmp_eq_u32 s[{sM1}:{sM1+1}], 1, v9
        v_cmp_eq_u32 s[{sM2}:{sM2+1}], 2, v9
        v_cmp_eq_u32 s[{sM3}:{sM3+1}], 3, v9
        v_lshrrev_b32 v9, 2, v2
        v_cmp_eq_u32 s[{sDiag}:{sDiag+1}], v9, v3
        s_waitcnt lgkmcnt(0)
        """)
        srd(k, sWS, 24, WS_SIZE)
        first = {"q": True}
        def reads(j, X, W):
            vx = vXc0 if j == 0 else vXc1; vs = vS0 if j == 0 else vS1
            it = []
            wo = j * 32 * 384
            def wr(c):
                return mk(f"ds_read_b64_tr_b16 {V(W+4*c,2)}, v{vWc} offset:{wo + 128*c}\nds_read_b64_tr_b16 {V(W+4*c+2,2)}, v{vWc} offset:{wo + 128*c + 4*384}", "rd")
            def xr(t): return mk(f"ds_read_b128 {V(X+4*t,4)}, v{vx} offset:{2048*t}", "rd")
            it += wr(1) + xr(0) + xr(1) + wr(2) + xr(2) + wr(0) + xr(3) + xr(4)
            it += mk(f"ds_read_b128 {V(X+20,4)}, v{vs}", "rd")
            return it
        def mfmas(X, W, init):
            def m(d, a, b):
                c = "0" if init else V(d, 4)
                return mk(f"v_mfma_f32_16x16x32_bf16 {V(d,4)}, {V(a,4)}, {V(b,4)}, {c}")
            Wq, Wk, Wv = W, W+4, W+8
            Xt = lambda t: X + 4*t
            g = []
            g += [m(aK+0, Wk, Xt(0)), m(aK+4, Wk, Xt(1)), m(aV+0, Xt(0), Wv), m(aV+4, Xt(1), Wv), m(aCK, Wk, ONES)]
            g += [m(aK+8, Wk, Xt(2)), m(aV+8, Xt(2), Wv), m(aQ+0, Wq, Xt(1)), m(aQ+4, Wq, Xt(2)), m(aCV, ONES, Wv)]
            g += [m(aK+12, Wk, Xt(3)), m(aV+12, Xt(3), Wv), m(aQ+8, Wq, Xt(3)), m(aCQ, Wq, ONES), m(aSH, ONES, Xt(0)), m(aGH, Xt(0), Xt(0))]
            g += [m(aK+16, Wk, Xt(4)), m(aV+16, Xt(4), Wv), m(aQ+12, Wq, Xt(4)), m(aSS, ONES, X+20), m(aGS, X+20, X+20)]
            return g
        B("A0")
        self.stamp(k, 1)
        k.add(reads(0, XA, WA))
        for i in range(8):
            g0 = mfmas(XA, WA, init=(i == 0))
            k.add(interleave(g0, reads(1, XB, WB), start=2))
            g1 = mfmas(XB, WB, init=False)
            half = 11
            for g in g1[:half]: k.add(g)
            if i < 7:
                d = SLOT if (i % 4) != 3 else -3*SLOT
                upd = mk("\n".join(f"v_add_u32 v{r}, {d & 0xffffffff if d < 0 else d}, v{r}" for r in (vXc0, vXc1, vS0, vS1, vWc)))
                k.add(upd)
                k.wait_lgkm("rd")
                B(f"A{i+1}")
                k.add(interleave(g1[half:], reads(0, XA, WA)))
            else:
                for g in g1[half:]: k.add(g)
        self.stamp(k, 2)
        k(f"s_lshl_b32 s{sT0}, s{sSG}, 2\nv_mov_b32 v9, s{sT0}\nglobal_load_dword v{vRdy}, v9, s[22:23] sc1")
        def stats(aS, aG, tau_s, t0):
            k(f"""
            v_cndmask_b32 v{t0}, v{aG}, v{aG+1}, s[{sM1}:{sM1+1}]
            v_cndmask_b32 v{t0}, v{t0}, v{aG+2}, s[{sM2}:{sM2+1}]
            v_cndmask_b32 v{t0}, v{t0}, v{aG+3}, s[{sM3}:{sM3+1}]
            v_mul_f32 v{t0+2}, {fbits(1/512)}, v{aS}
            v_mul_f32 v{t0}, {fbits(1/512)}, v{t0}
            v_fma_f32 v{t0}, -v{t0+2}, v{t0+2}, v{t0}
            v_max_f32 v{t0}, 0, v{t0}
            v_add_f32 v{t0}, {fbits(1e-5)}, v{t0}
            v_rsq_f32 v{t0+3}, v{t0}
            """)
        stats(aSS, aGS, None, 16)
        stats(aSH, aGH, None, 20)
        k(f"""
        v_lshlrev_b32 v9, 3, v2
        v_add_u32 v9, {T_STAT}, v9
        s_add_u32 s{sT0}, s{sW}, 1
        s_lshl_b32 s{sT0}, s{sT0}, 7
        v_add_u32 v10, s{sT0}, v9
        s_mov_b64 exec, s[{sDiag}:{sDiag+1}]
        ds_write_b64 v10, v[18:19]
        ds_write_b64 v9, v[22:23]
        s_mov_b64 exec, -1
        s_waitcnt lgkmcnt(0)
        """)
        B("A8")
        cS = 192
        rS = 16
        k(f"v_lshlrev_b32 v10, 5, v3\nv_add_u32 v10, {T_STAT}, v10")
        for t in range(5): k(f"ds_read_b64 {V(cS+2*t,2)}, v9 offset:{128*t}")
        for t in range(5):
            k(f"ds_read_b128 {V(rS+8*t,4)}, v10 offset:{128*t}\nds_read_b128 {V(rS+8*t+4,4)}, v10 offset:{128*t+16}")
        Qp, Kp, Vp = 56, 64, 74
        cq = 204
        for t in range(5):
            for r in range(4):
                a = aK + 4*t + r
                k(f"v_fma_f32 v{a}, -v{cS+2*t}, v{aCK+r}, v{a}")
            for r in range(4):
                a = aK + 4*t + r
                k(f"v_mul_f32 v{a}, v{a}, v{cS+2*t+1}")
            k(f"v_cvt_pk_bf16_f32 v{Kp+2*t}, v{aK+4*t}, v{aK+4*t+1}\nv_cvt_pk_bf16_f32 v{Kp+2*t+1}, v{aK+4*t+2}, v{aK+4*t+3}")
        for t in range(1, 5):
            for r in range(4):
                a = aQ + 4*(t-1) + r
                k(f"v_fma_f32 v{a}, -v{cS+2*t}, v{aCQ+r}, v{a}")
            k(f"v_cvt_pk_bf16_f32 v{Qp+2*(t-1)}, v{aQ+4*(t-1)}, v{aQ+4*(t-1)+1}\nv_cvt_pk_bf16_f32 v{Qp+2*(t-1)+1}, v{aQ+4*(t-1)+2}, v{aQ+4*(t-1)+3}")
            k(f"v_mul_f32 v{cq+t-1}, {fbits(0.25*LOG2E)}, v{cS+2*t+1}")
        Sc, Sp = 208, 224
        blocks = [(1, 0, bPrev0), (2, 0, bSpec), (3, 1, bPrev), (4, 2, bPrev)]
        for b, (tq, tp, bias) in enumerate(blocks):
            k(f"v_mfma_f32_16x16x16_bf16 {V(Sc+4*b,4)}, {V(Kp+2*tq,2)}, {V(Qp+2*(tq-1),2)}, {V(bCur,4)}")
            k(f"v_mfma_f32_16x16x16_bf16 {V(Sp+4*b,4)}, {V(Kp+2*tp,2)}, {V(Qp+2*(tq-1),2)}, {V(bias,4)}")
        for t in range(5):
            for r in range(4):
                a = aV + 4*t + r
                k(f"v_fma_f32 v{a}, -v{rS+8*t+2*r}, v{aCV}, v{a}")
            for r in range(4):
                a = aV + 4*t + r
                k(f"v_mul_f32 v{a}, v{a}, v{rS+8*t+2*r+1}")
            k(f"v_cvt_pk_bf16_f32 v{Vp+2*t}, v{aV+4*t}, v{aV+4*t+1}\nv_cvt_pk_bf16_f32 v{Vp+2*t+1}, v{aV+4*t+2}, v{aV+4*t+3}")
        MX, TM, NB = 88, 92, 96
        EP, PC, PP = 100, 108, 116
        aO, aL = 124, 140
        R4 = range(4)
        for b in R4:
            for r in R4: k(f"v_max_f32 v{Sc+4*b+r}, v{Sc+4*b+r}, v{Sp+4*b+r}")
        for b in R4: k(f"v_max3_f32 v{MX+b}, v{Sc+4*b}, v{Sc+4*b+1}, v{Sc+4*b+2}")
        for b in R4: k(f"v_max_f32 v{MX+b}, v{MX+b}, v{Sc+4*b+3}")
        for sw in ("v_permlane32_swap_b32", "v_permlane16_swap_b32"):
            for b in R4: k(f"v_mov_b32 v{TM+b}, v{MX+b}")
            for b in R4: k(f"{sw} v{MX+b}, v{TM+b}")
            for b in R4: k(f"v_max_f32 v{MX+b}, v{MX+b}, v{TM+b}")
        for b in R4: k(f"v_mul_f32 v{NB+b}, v{MX+b}, v{cq+b}")
        for b in R4:
            for r in R4: k(f"v_fma_f32 v{Sc+4*b+r}, v{Sc+4*b+r}, v{cq+b}, -v{NB+b}")
        for b in R4:
            for r in R4: k(f"v_exp_f32 v{Sc+4*b+r}, v{Sc+4*b+r}")
        for b in R4:
            k(f"v_cvt_pk_bf16_f32 v{EP+2*b}, v{Sc+4*b}, v{Sc+4*b+1}\nv_cvt_pk_bf16_f32 v{EP+2*b+1}, v{Sc+4*b+2}, v{Sc+4*b+3}")
        for b in R4:
            k(f"v_and_b32 v{PC+2*b}, v{EP+2*b}, v{mC}\nv_and_b32 v{PC+2*b+1}, v{EP+2*b+1}, v{mC+1}")
        for b in R4:
            k(f"v_xor_b32 v{PP+2*b}, v{EP+2*b}, v{PC+2*b}\nv_xor_b32 v{PP+2*b+1}, v{EP+2*b+1}, v{PC+2*b+1}")
        for b, (tq, tp, bias) in enumerate(blocks):
            k(f"v_mfma_f32_16x16x16_bf16 {V(aO+4*b,4)}, {V(Vp+2*tp,2)}, {V(PP+2*b,2)}, 0")
            k(f"v_mfma_f32_16x16x16_bf16 {V(aL+4*b,4)}, {V(ONES,2)}, {V(PP+2*b,2)}, 0")
        for b, (tq, tp, bias) in enumerate(blocks):
            k(f"v_mfma_f32_16x16x16_bf16 {V(aO+4*b,4)}, {V(Vp+2*tq,2)}, {V(PC+2*b,2)}, {V(aO+4*b,4)}")
            k(f"v_mfma_f32_16x16x16_bf16 {V(aL+4*b,4)}, {V(ONES,2)}, {V(PC+2*b,2)}, {V(aL+4*b,4)}")
        k(f"""
        s_lshl_b32 s{sT0}, s{sRB}, 16
        s_lshl_b32 s{sT1}, s{sCG}, 2
        s_add_u32 s{sT1}, s{sT1}, s{sW}
        s_lshl_b32 s{sT1}, s{sT1}, 10
        s_add_u32 s{sT0}, s{sT0}, s{sT1}
        s_add_u32 s{sT1}, s{sT0}, 32768
        """)
        for b in R4: k(f"v_rcp_f32 v{TM+b}, v{aL+4*b}")
        for b in R4:
            for r in R4: k(f"v_mul_f32 v{aO+4*b+r}, v{aO+4*b+r}, v{TM+b}")
        OP = 156
        for b in R4:
            q = OP + 4*(b >> 1) + 2*(b & 1)
            k(f"v_cvt_pk_bf16_f32 v{q}, v{aO+4*b}, v{aO+4*b+1}\nv_cvt_pk_bf16_f32 v{q+1}, v{aO+4*b+2}, v{aO+4*b+3}")
        for blk in range(2):
            q = OP + 4*blk
            k(f"v_permlane16_swap_b32 v{q}, v{q+2}\nv_permlane16_swap_b32 v{q+1}, v{q+3}")
        for blk in range(2):
            q = OP + 4*blk
            k(f"buffer_store_dwordx4 {V(q,4)}, v1, {S(sWS)}, s{sT0+blk} offen sc1")
        l = k.newlabel("rdy")
        k(f"v_readfirstlane_b32 s{sT0}, v{vRdy}\ns_cmp_lg_u32 s{sT0}, 0\ns_cbranch_scc1 {l}")
        k(f"s_lshl_b32 s{sT1}, s{sSG}, 2\nv_mov_b32 v9, s{sT1}")
        self.spin_poll(k, 9, 10, "s[22:23]", 1)
        k.label(l)
        self.signal(k, sRB, T_CNT, 9, 10)
        self.stamp(k, 3)

    def tr_addr(self, k, v0r, perm, base_s=None, base_imm=0):
        k(f"""
        v_lshrrev_b32 v2, 5, v0
        v_bfe_u32 v3, v0, 2, 2
        v_lshl_add_u32 v2, v2, {2 if perm else 3}, v3
        v_lshlrev_b32 v2, 7, v2
        v_lshrrev_b32 v3, 1, v3
        v_lshl_add_u32 v2, v3, 6, v2
        v_bfe_u32 v3, v0, 4, 1
        v_lshl_add_u32 v2, v3, 5, v2
        v_and_b32 v3, 3, v0
        v_lshl_add_u32 v2, v3, 3, v2
        """)
        if base_s is not None: k(f"v_add_u32 v2, s{base_s}, v2")
        if base_imm: k(f"v_add_u32 v2, {base_imm}, v2")
        k(f"v_mov_b32 v{v0r}, v2\nv_xor_b32 v{v0r+1}, 64, v2")

    def p2(self, k):
        B = lambda n: self.barrier(k, n, "c")
        sTG, sKH = 90, 91
        WF, OF, AC = 16, 144, 208
        HK = 248
        k(f"s_lshr_b32 s{sTG}, s{sW}, 1\ns_and_b32 s{sKH}, s{sW}, 1\ns_lshl_b32 s{sT0}, s{sKH}, 15")
        self.tr_addr(k, 4, perm=False, base_s=sT0, base_imm=R0)
        B("B0")
        for s in range(16):
            for tip in range(2):
                f = WF + 8*s + 4*tip
                k(f"ds_read_b64_tr_b16 {V(f,2)}, v{4+tip} offset:{16*s*128}\nds_read_b64_tr_b16 {V(f+2,2)}, v{4+tip} offset:{(16*s+4)*128}", "wo")
        k(f"""
        v_and_b32 v2, 31, v0
        s_lshl_b32 s{sT0}, s{sTG}, 5
        v_add_u32 v2, s{sT0}, v2
        v_lshrrev_b32 v3, 1, v2
        v_and_b32 v3, 7, v3
        s_lshl_b32 s{sT0}, s{sKH}, 2
        v_xor_b32 v3, s{sT0}, v3
        v_lshlrev_b32 v3, 4, v3
        v_lshl_add_u32 v2, v2, 7, v3
        v_lshrrev_b32 v3, 5, v0
        v_lshl_add_u32 v2, v3, 3, v2
        v_add_u32 v2, {XR}, v2
        """)
        for a in range(4):
            if a: k(f"v_xor_b32 v3, {16*a}, v2")
            k(f"ds_read_b64 {V(240+2*a,2)}, v{3 if a else 2}", "wo")
        k.wait_lgkm("wo")
        B("B1")
        self.stamp(k, 4)
        k(f"s_lshl_b32 s{sT0}, s{sRB}, 8\ns_add_u32 s{sT0}, s{sT0}, {CNT_OFF}\nv_mov_b32 v9, s{sT0}")
        self.spin_poll(k, 9, 10, "s[24:25]", 8)
        k(f"""
        s_lshl_b32 s{sT0}, s{sRB}, 1
        s_add_u32 s{sT0}, s{sT0}, s{sTG}
        s_lshl_b32 s{sT0}, s{sT0}, 15
        s_lshl_b32 s{sT1}, s{sKH}, 14
        s_add_u32 s{sT0}, s{sT0}, s{sT1}
        """)
        for s in range(16):
            if s % 4 == 0 and s: k(f"s_add_u32 s{sT0}, s{sT0}, 4096")
            k(f"buffer_load_dwordx4 {V(OF+4*s,4)}, v1, {S(sWS)}, s{sT0} offen offset:{1024*(s%4)} sc1")
        for s in range(16):
            for tip in range(2):
                c = "0" if s == 0 else V(AC+16*tip, 16)
                k(f"v_mfma_f32_32x32x16_bf16 {V(AC+16*tip,16)}, {V(WF+8*s+4*tip,4)}, {V(OF+4*s,4)}, {c}")
        self.stamp(k, 5)
        l0 = k.newlabel("kh1"); l1 = k.newlabel("khd")
        k(f"s_lshl_b32 s{sT0}, s{sW}, 12\ns_add_u32 s{sT0}, s{sT0}, {EX}\nv_add_u32 v2, s{sT0}, v1\nv_xor_b32 v3, 4096, v2")
        k(f"s_cmp_eq_u32 s{sKH}, 0\ns_cbranch_scc0 {l0}")
        for q in range(4): k(f"ds_write_b128 v2, {V(AC+16+4*q,4)} offset:{1024*q}")
        for r in range(16): k(f"v_mov_b32 v{16+r}, v{AC+r}")
        k(f"s_branch {l1}")
        k.label(l0)
        for q in range(4): k(f"ds_write_b128 v2, {V(AC+4*q,4)} offset:{1024*q}")
        for r in range(16): k(f"v_mov_b32 v{16+r}, v{AC+16+r}")
        k.label(l1)
        k("s_waitcnt lgkmcnt(0)")
        B("B2")
        for q in range(4): k(f"ds_read_b128 {V(32+4*q,4)}, v3 offset:{1024*q}")
        for a in range(4):
            k(f"v_lshlrev_b32 v{48+4*a}, 16, v{240+2*a}\nv_and_b32 v{48+4*a+1}, 0xffff0000, v{240+2*a}")
            k(f"v_lshlrev_b32 v{48+4*a+2}, 16, v{240+2*a+1}\nv_and_b32 v{48+4*a+3}, 0xffff0000, v{240+2*a+1}")
        for r in range(16): k(f"v_add_f32 v{16+r}, v{16+r}, v{48+r}")
        for r in range(16): k(f"v_add_f32 v{16+r}, v{16+r}, v{32+r}")
        for r in range(0, 16, 2): k(f"v_cvt_pk_bf16_f32 v{HK+r//2}, v{16+r}, v{17+r}")
        k(f"""
        s_lshl_b32 s{sT0}, s{sRB}, 1
        s_add_u32 s{sT0}, s{sT0}, s{sTG}
        s_lshl_b32 s{sT2}, s{sT0}, 12
        s_lshl_b32 s{sT0}, s{sT0}, 15
        s_lshl_b32 s{sT1}, s{sCG}, 1
        s_add_u32 s{sT1}, s{sT1}, s{sKH}
        s_lshl_b32 s{sT3}, s{sT1}, 8
        s_add_u32 s{sT2}, s{sT2}, s{sT3}
        s_add_u32 s{sT2}, s{sT2}, {ST_OFF}
        s_lshl_b32 s{sT1}, s{sT1}, 11
        s_add_u32 s{sT0}, s{sT0}, s{sT1}
        s_add_u32 s{sT0}, s{sT0}, {H_OFF}
        buffer_store_dwordx4 {V(HK,4)}, v1, {S(sWS)}, s{sT0} offen sc1
        buffer_store_dwordx4 {V(HK+4,4)}, v1, {S(sWS)}, s{sT0} offen offset:1024 sc1
        """)
        k("v_add_f32 v64, v16, v17\nv_mul_f32 v65, v16, v16\nv_fmac_f32 v65, v17, v17")
        for r in range(2, 16):
            k(f"v_add_f32 v64, v64, v{16+r}\nv_fmac_f32 v65, v{16+r}, v{16+r}")
        k("""
        v_mov_b32 v66, v64
        v_mov_b32 v67, v65
        v_permlane32_swap_b32 v64, v66
        v_permlane32_swap_b32 v65, v67
        v_add_f32 v64, v64, v66
        v_add_f32 v65, v65, v67
        v_lshlrev_b32 v2, 3, v0
        s_mov_b32 exec_hi, 0
        """)
        k(f"buffer_store_dwordx2 v[64:65], v2, {S(sWS)}, s{sT2} offen sc1\ns_mov_b32 exec_hi, -1")
        k(f"s_add_u32 s{sT1}, s{sSG}, 32")
        k(f"s_mov_b32 s92, s{sT1}")
        self.signal(k, 92, T_CNT + 4, 9, 10)
        self.stamp(k, 6)

    def p3(self, k):
        B = lambda n: self.barrier(k, n, "c")
        HF = 16; AC = [144, 160]; WF = 176; TT = 192; TB = 208
        RSTD, NRM, PK = 224, 225, 226
        vA = 4
        vT = 8
        skipall = k.newlabel("p3skip"); done = k.newlabel("p3done")
        self.tr_addr(k, vA, perm=True, base_imm=R1)
        k(f"v_add_u32 v6, {(R0 - R1) & 0xffffffff}, v4\nv_add_u32 v7, {(R0 - R1) & 0xffffffff}, v5")
        k(f"v_lshrrev_b32 v{vT}, 5, v0\nv_lshlrev_b32 v{vT}, 4, v{vT}\nv_add_u32 v{vT}, {TAB}, v{vT}")
        B("C0")
        k(f"s_cmp_ge_u32 s{sMEM}, 14\ns_cbranch_scc1 {skipall}")
        k(f"""
        s_lshl_b32 s{sT0}, s{sMEM}, 7
        s_lshl_b32 s{sT1}, s{sW}, 5
        s_add_u32 s{sT0}, s{sT0}, s{sT1}
        s_lshl_b32 s{sT0}, s{sT0}, 1
        v_lshlrev_b32 v2, 2, v0
        v_add_u32 v2, s{sT0}, v2
        s_mov_b64 exec, 0xffff
        global_load_dword v9, v2, s[14:15]
        s_mov_b64 exec, -1
        s_cmp_lt_u32 s{sW}, 2
        s_cselect_b32 s{sT0}, 0, {(R0 - R1) & 0xffffffff}
        s_and_b32 s{sT1}, s{sW}, 1
        s_lshl_b32 s{sT1}, s{sT1}, 6
        v_xor_b32 v10, s{sT1}, v4
        v_add_u32 v10, s{sT0}, v10
        v_mov_b32 v12, 0x3f803f80
        v_mov_b32 v13, 0x3f803f80
        v_mov_b32 v14, 0x3f803f80
        v_mov_b32 v15, 0x3f803f80
        """)
        def trA(dst, vaddr, s):
            return mk(f"ds_read_b64_tr_b16 {V(dst,2)}, v{vaddr} offset:{16*s*128}\nds_read_b64_tr_b16 {V(dst+2,2)}, v{vaddr} offset:{(16*s+8)*128}")
        nb = 6
        for s in range(nb - 1): k.add(trA(HF + 4*s, 10, s))
        for s in range(32):
            if s + nb - 1 < 32: k.add(trA(HF + 4*((s+nb-1) % nb), 10, s + nb - 1))
            c = "0" if s == 0 else V(AC[0], 16)
            k(f"v_mfma_f32_32x32x16_bf16 {V(AC[0],16)}, {V(HF+4*(s%nb),4)}, {V(12,4)}, {c}")
        k(f"""
        s_mov_b64 exec, 0xffff
        v_lshlrev_b32 v2, 16, v9
        v_and_b32 v3, 0xffff0000, v9
        s_lshl_b32 s{sT0}, s{sW}, 7
        s_add_u32 s{sT0}, s{sT0}, {T_B1}
        v_lshl_add_u32 v10, v0, 3, s{sT0}
        ds_write_b64 v10, v[2:3]
        s_lshl_b32 s{sT0}, s{sW}, 7
        s_add_u32 s{sT0}, s{sT0}, {T_CS - TAB}
        s_mov_b32 exec_lo, 1
        s_mov_b32 exec_hi, 1
        v_add_u32 v10, s{sT0}, v{vT}
        """)
        for a in range(4): k(f"ds_write_b128 v10, {V(AC[0]+4*a,4)} offset:{32*a}")
        k("s_mov_b64 exec, -1\ns_waitcnt lgkmcnt(0)")
        B("C1")
        self.stamp(k, 7)
        k(f"s_add_u32 s{sT0}, s{sSG}, 32\ns_lshl_b32 s{sT0}, s{sT0}, 8\ns_add_u32 s{sT0}, s{sT0}, {CNT_OFF}\nv_mov_b32 v9, s{sT0}")
        self.spin_poll(k, 9, 10, "s[24:25]", 16)
        sB = 90
        k(f"""
        s_lshl_b32 s{sB}, s{sSG}, 2
        s_add_u32 s{sB}, s{sB}, s{sW}
        s_lshl_b32 s{sT0}, s{sB}, 12
        s_add_u32 s{sT0}, s{sT0}, {ST_OFF}
        v_and_b32 v2, 31, v0
        v_lshlrev_b32 v2, 3, v2
        v_lshrrev_b32 v3, 5, v0
        v_lshl_add_u32 v2, v3, 8, v2
        """)
        for j in range(8): k(f"buffer_load_dwordx2 {V(TT+2*j,2)}, v2, {S(sWS)}, s{sT0} offen offset:{512*j} sc1")
        k(f"s_lshl_b32 s{sT0}, s{sB}, 15\ns_add_u32 s{sT0}, s{sT0}, {H_OFF}")
        for s in range(32):
            if s % 4 == 0 and s: k(f"s_add_u32 s{sT0}, s{sT0}, 4096")
            k(f"buffer_load_dwordx4 {V(HF+4*s,4)}, v1, {S(sWS)}, s{sT0} offen offset:{1024*(s%4)} sc1")
        for j in range(1, 8): k(f"v_add_f32 v{TT}, v{TT}, v{TT+2*j}\nv_add_f32 v{TT+1}, v{TT+1}, v{TT+2*j+1}")
        k(f"""
        v_mov_b32 v{TT+2}, v{TT}
        v_mov_b32 v{TT+3}, v{TT+1}
        v_permlane32_swap_b32 v{TT}, v{TT+2}
        v_permlane32_swap_b32 v{TT+1}, v{TT+3}
        v_add_f32 v{TT}, v{TT}, v{TT+2}
        v_add_f32 v{TT+1}, v{TT+1}, v{TT+3}
        v_mul_f32 v{TT}, {fbits(1/512)}, v{TT}
        v_mul_f32 v{TT+1}, {fbits(1/512)}, v{TT+1}
        v_fma_f32 v{TT+1}, -v{TT}, v{TT}, v{TT+1}
        v_max_f32 v{TT+1}, 0, v{TT+1}
        v_add_f32 v{TT+1}, {fbits(1e-5)}, v{TT+1}
        v_rsq_f32 v{RSTD}, v{TT+1}
        v_mul_f32 v{NRM}, v{TT}, v{RSTD}
        """)
        sH1 = 91
        k(f"s_mul_i32 s{sH1}, s{sB}, 114688\ns_lshl_b32 s{sT0}, s{sMEM}, 13\ns_add_u32 s{sH1}, s{sH1}, s{sT0}\ns_add_u32 s{sH1}, s{sH1}, {H1_OFF}")
        K0 = -2.0 * 0.7978845608028654 * LOG2E; K1 = K0 * 0.044715
        sK1 = 92
        k(f"s_mov_b32 s{sK1}, {fbits(K1)}\nv_mov_b32 v9, {fbits(K0)}")
        def epi(c):
            A = AC[c & 1]; it = []
            def tabs(a):
                tb = TB + 8*(a & 1)
                return mk(f"ds_read_b128 {V(tb,4)}, v{vT} offset:{T_CS - TAB + (32*c + 8*a)*4}\nds_read_b128 {V(tb+4,4)}, v{vT} offset:{T_B1 - TAB + (32*c + 8*a)*4}")
            it += tabs(0)
            for a in range(4):
                tb = TB + 8*(a & 1)
                if a < 3: it += tabs(a+1)
                X = [A + 4*a + b for b in range(4)]; T = [TT + 4*a + b for b in range(4)]
                for b in range(4): it += mk(f"v_fma_f32 v{tb+4+b}, -v{NRM}, v{tb+b}, v{tb+4+b}")
                for b in range(4): it += mk(f"v_fma_f32 v{X[b]}, v{X[b]}, v{RSTD}, v{tb+4+b}")
                for b in range(4): it += mk(f"v_mul_f32 v{T[b]}, v{X[b]}, v{X[b]}")
                for b in range(4): it += mk(f"v_fma_f32 v{T[b]}, v{T[b]}, s{sK1}, v9")
                for b in range(4): it += mk(f"v_mul_f32 v{T[b]}, v{X[b]}, v{T[b]}")
                for b in range(4): it += mk(f"v_exp_f32 v{T[b]}, v{T[b]}")
                for b in range(4): it += mk(f"v_add_f32 v{T[b]}, 1.0, v{T[b]}")
                for b in range(4): it += mk(f"v_rcp_f32 v{T[b]}, v{T[b]}")
                for b in range(4): it += mk(f"v_mul_f32 v{T[b]}, v{X[b]}, v{T[b]}")
                it += mk(f"v_cvt_pk_bf16_f32 v{PK+2*a}, v{T[0]}, v{T[1]}\nv_cvt_pk_bf16_f32 v{PK+2*a+1}, v{T[2]}, v{T[3]}")
                if a & 1:
                    off = (2*c + (a >> 1)) * 1024
                    so = f"s{sH1}"
                    if off >= 4096:
                        it += mk(f"s_add_u32 s{sT1}, s{sH1}, {off & ~4095}"); so = f"s{sT1}"
                    it += mk(f"buffer_store_dwordx4 {V(PK+4*(a>>1),4)}, v1, {S(sWS)}, {so} offen offset:{off & 4095} sc1")
            return it
        nb = 4
        def tile_groups(c):
            va = vA + 2*(c >> 1) + (c & 1)
            pre = []
            for s in range(nb - 1): pre += [x for x in trA(WF + 4*s, va, s)]
            for x in pre: x.tag = "w1"
            groups = []
            for s in range(32):
                g = []
                if s + nb - 1 < 32:
                    t = trA(WF + 4*((s+nb-1) % nb), va, s + nb - 1)
                    for x in t: x.tag = "w1"
                    g += t
                cc = "0" if s == 0 else V(AC[c & 1], 16)
                g += mk(f"v_mfma_f32_32x32x16_bf16 {V(AC[c&1],16)}, {V(WF+4*(s%nb),4)}, {V(HF+4*s,4)}, {cc}")
                groups.append(g)
            return pre, groups
        for c in range(4):
            pre, groups = tile_groups(c)
            k.add(pre)
            if c == 0:
                for g in groups: k.add(g)
            else:
                k.add(interleave(groups, epi(c-1), start=2))
            if c == 1:
                k.wait_lgkm("w1"); B("C2")
            if c == 3:
                k.wait_lgkm("w1"); B("C3")
        self.stamp(k, 8)
        k.add(epi(3))
        k(f"s_add_u32 s92, s{sSG}, 48")
        self.signal(k, 92, T_CNT + 8, 9, 10)
        k(f"s_branch {done}")
        k.label(skipall)
        B("C1x"); B("C2x"); B("C3x")
        self.bar_c = [b for b in self.bar_c if not b.endswith("x")]
        k.label(done)
        k("s_waitcnt vmcnt(0) lgkmcnt(0)")

    def p4(self, k):
        B = lambda n: self.barrier(k, n, "c")
        sTG, sKH = 90, 91
        AC = 208; HF = 16; NH = 24; WF = 112; HK = 248; B2 = 144
        k(f"s_lshr_b32 s{sTG}, s{sW}, 1\ns_and_b32 s{sKH}, s{sW}, 1\ns_mul_i32 s{sT0}, s{sKH}, {112*128}")
        self.tr_addr(k, 4, perm=True, base_s=sT0, base_imm=UBASE[0])
        k(f"""
        s_lshl_b32 s{sT0}, s{sCG}, 7
        s_lshl_b32 s{sT1}, s{sKH}, 6
        s_add_u32 s{sT0}, s{sT0}, s{sT1}
        v_lshrrev_b32 v2, 5, v0
        v_lshlrev_b32 v2, 3, v2
        v_add_u32 v2, s{sT0}, v2
        """)
        for a in range(4): k(f"global_load_dwordx2 {V(B2+2*a,2)}, v2, s[18:19] offset:{16*a}")
        B("D0")
        k(f"s_add_u32 s{sT0}, s{sSG}, 48\ns_lshl_b32 s{sT0}, s{sT0}, 8\ns_add_u32 s{sT0}, s{sT0}, {CNT_OFF}\nv_mov_b32 v9, s{sT0}")
        self.spin_poll(k, 9, 10, "s[24:25]", 14)
        self.stamp(k, 9)
        sH = 92
        k(f"""
        s_lshl_b32 s{sT0}, s{sRB}, 1
        s_add_u32 s{sT0}, s{sT0}, s{sTG}
        s_mul_i32 s{sH}, s{sT0}, 114688
        s_mul_i32 s{sT0}, s{sKH}, {56*1024}
        s_add_u32 s{sH}, s{sH}, s{sT0}
        s_add_u32 s{sH}, s{sH}, {H1_OFF}
        """)
        def hload(i):
            it = []
            if i % 4 == 0 and i: it += mk(f"s_add_u32 s{sH}, s{sH}, 4096")
            it += mk(f"buffer_load_dwordx4 {V(HF+4*(i%NH),4)}, v1, {S(sWS)}, s{sH} offen offset:{1024*(i%4)} sc1")
            return it
        for i in range(NH): k.add(hload(i))
        def wread(i):
            j = i % 7; b = WF + 8*(i % 4); it = []
            for tip in range(2):
                it += mk(f"ds_read_b64_tr_b16 {V(b+4*tip,2)}, v{4+tip} offset:{16*j*128}\nds_read_b64_tr_b16 {V(b+4*tip+2,2)}, v{4+tip} offset:{(16*j+8)*128}", "w2")
            return it
        for u in range(8):
            i0 = 7*u
            k.add(wread(i0)); k.add(wread(i0+1))
            for j in range(7):
                i = i0 + j
                if j + 2 < 7: k.add(wread(i + 2))
                b = WF + 8*(i % 4)
                for tip in range(2):
                    c = "0" if i == 0 else V(AC+16*tip, 16)
                    k(f"v_mfma_f32_32x32x16_bf16 {V(AC+16*tip,16)}, {V(b+4*tip,4)}, {V(HF+4*(i%NH),4)}, {c}")
                if i + NH < 56: k.add(hload(i + NH))
            if u < 7:
                d = (UBASE[u+1] - UBASE[u]) & 0xffffffff
                k(f"v_add_u32 v4, {d}, v4\nv_add_u32 v5, {d}, v5")
            k.wait_lgkm("w2")
            if u < 7: B(f"D{u+1}")
        l0 = k.newlabel("kh1"); l1 = k.newlabel("khd")
        k(f"s_lshl_b32 s{sT0}, s{sW}, 12\ns_add_u32 s{sT0}, s{sT0}, {EX4}\nv_add_u32 v2, s{sT0}, v1\nv_xor_b32 v3, 4096, v2")
        k(f"s_cmp_eq_u32 s{sKH}, 0\ns_cbranch_scc0 {l0}")
        for q in range(4): k(f"ds_write_b128 v2, {V(AC+16+4*q,4)} offset:{1024*q}")
        for r in range(16): k(f"v_mov_b32 v{16+r}, v{AC+r}")
        k(f"s_branch {l1}")
        k.label(l0)
        for q in range(4): k(f"ds_write_b128 v2, {V(AC+4*q,4)} offset:{1024*q}")
        for r in range(16): k(f"v_mov_b32 v{16+r}, v{AC+16+r}")
        k.label(l1)
        k("s_waitcnt lgkmcnt(0)")
        B("D8")
        for q in range(4): k(f"ds_read_b128 {V(32+4*q,4)}, v3 offset:{1024*q}")
        for a in range(4):
            k(f"v_lshlrev_b32 v{48+4*a}, 16, v{B2+2*a}\nv_and_b32 v{48+4*a+1}, 0xffff0000, v{B2+2*a}")
            k(f"v_lshlrev_b32 v{48+4*a+2}, 16, v{B2+2*a+1}\nv_and_b32 v{48+4*a+3}, 0xffff0000, v{B2+2*a+1}")
        for r in range(16): k(f"v_add_f32 v{16+r}, v{16+r}, v{48+r}")
        for r in range(0, 16, 2):
            k(f"v_lshlrev_b32 v{48+r}, 16, v{HK+r//2}\nv_and_b32 v{48+r+1}, 0xffff0000, v{HK+r//2}")
        for r in range(16): k(f"v_add_f32 v{16+r}, v{16+r}, v{48+r}")
        for r in range(16): k(f"v_add_f32 v{16+r}, v{16+r}, v{32+r}")
        for r in range(0, 16, 2): k(f"v_cvt_pk_bf16_f32 v{64+r//2}, v{16+r}, v{17+r}")
        k("""
        v_permlane32_swap_b32 v64, v66
        v_permlane32_swap_b32 v65, v67
        v_permlane32_swap_b32 v68, v70
        v_permlane32_swap_b32 v69, v71
        """)
        srd(k, sOUT, 20, 2048*1024)
        k(f"""
        v_and_b32 v2, 15, v0
        v_lshlrev_b32 v2, 1, v2
        v_bfe_u32 v3, v0, 4, 1
        v_add_u32 v2, v2, v3
        s_lshl_b32 s{sT0}, s{sRB}, 1
        s_add_u32 s{sT0}, s{sT0}, s{sTG}
        s_lshl_b32 s{sT0}, s{sT0}, 5
        v_add_u32 v2, s{sT0}, v2
        v_lshlrev_b32 v2, 10, v2
        v_lshrrev_b32 v3, 5, v0
        v_lshl_add_u32 v2, v3, 4, v2
        s_lshl_b32 s{sT0}, s{sCG}, 7
        s_lshl_b32 s{sT1}, s{sKH}, 6
        s_add_u32 s{sT0}, s{sT0}, s{sT1}
        buffer_store_dwordx4 v[64:67], v2, {S(sOUT)}, s{sT0} offen
        buffer_store_dwordx4 v[68:71], v2, {S(sOUT)}, s{sT0} offen offset:32
        """)

    def build(self):
        k = KB()
        self.prologue(k)
        self.compute(k)
        self.loader(k)
        k.label("L_END")
        k("s_endpgm")
        assert self.bar_c == self.bar_l, (self.bar_c, self.bar_l)
        st = {}
        body = finalize(k.items, stats=st)
        self.st = st
        hdr = open(os.path.join(os.path.dirname(os.path.abspath(__file__)), "header.txt")).read()
        txt = hdr + f"; @launch grid=(256,1,1) block=(512,1,1) lds={LDS_BYTES}\n"
        txt += '.amdgcn_target "amdgcn-amd-amdhsa--gfx950"\n.text\n'
        txt += f".globl {NAME}\n.p2align 8\n.type {NAME},@function\n{NAME}:\n" + body
        txt += f""".section .rodata,"a"
.p2align 6
.amdhsa_kernel {NAME}
  .amdhsa_next_free_vgpr 256
  .amdhsa_next_free_sgpr 102
  .amdhsa_accum_offset 256
  .amdhsa_group_segment_fixed_size 0
  .amdhsa_kernarg_size 88
  .amdhsa_user_sgpr_count 2
  .amdhsa_user_sgpr_kernarg_segment_ptr 1
  .amdhsa_system_sgpr_workgroup_id_x 1
.end_amdhsa_kernel
"""
        return txt

if __name__ == "__main__":
    import argparse
    ap = argparse.ArgumentParser()
    ap.add_argument("-o", default="k.s")
    ap.add_argument("--stop", type=int, default=4)
    ap.add_argument("--stamps", action="store_true")
    a = ap.parse_args()
    g = Gen(stop=a.stop, stamps=a.stamps)
    t = g.build()
    open(a.o, "w").write(t)
    print("written", a.o, len(t), "bytes", g.st, "barriers", len(g.bar_c))
```
